```python
import torch

def _softmax(x, axis=-1):
    return torch.softmax(x, dim=axis)
def _gelu(x):
    return torch.nn.functional.gelu(x, approximate="tanh")
def _silu(x):
    return torch.nn.functional.silu(x)
def _sigmoid(x):
    return torch.sigmoid(x)
def _layernorm(x, axis=-1, eps=1e-5):
    m = x.mean(dim=axis, keepdim=True)
    v = x.var(dim=axis, keepdim=True, unbiased=False)
    return (x - m) / torch.sqrt(v + eps)
def _scatter_add(tgt, idx, src, axis=0):
    return tgt.clone().index_add_(axis, idx, src)
def _segment_sum(src, seg, n):
    out = torch.zeros((n,) + src.shape[1:], dtype=src.dtype)
    return out.index_add_(0, seg, src)
def _pad(x, pw):
    flat = tuple(v for pair in reversed(pw) for v in pair)
    return torch.nn.functional.pad(x, flat)

kernel_name = 'interleave_layers__sliding_local_dilated__geglu_ffn__prompt'

def setup_inputs():

    _w = (lambda a: (lambda t: t.to(torch.bfloat16) if t.is_floating_point() else t)(torch.as_tensor(a)))
    def _A_setup():
        B, S, D = 1, 2048, 512
        return {
            "x": _w((lambda *s: torch.randn(*s, dtype=torch.bfloat16) * 0.05)(B, S, D)),
            "wqkv": _w((lambda *s: torch.randn(*s, dtype=torch.bfloat16) * 0.05)(D, 3 * D)),
            "wo": _w((lambda *s: torch.randn(*s, dtype=torch.bfloat16) * 0.05)(D, D)),
        }
    _A_in = _A_setup()

    def _B_setup():
        B, S, D, F = 1, 2048, 512, 1792
        return {
            "x": _w((lambda *s: torch.randn(*s, dtype=torch.bfloat16) * 0.05)(B, S, D)),
            "w_gate": _w((lambda *s: torch.randn(*s, dtype=torch.bfloat16) * 0.05)(D, F)),
            "w_up": _w((lambda *s: torch.randn(*s, dtype=torch.bfloat16) * 0.05)(D, F)),
            "w_down": _w((lambda *s: torch.randn(*s, dtype=torch.bfloat16) * 0.05)(F, D)),
        }
    _B_in = _B_setup()

    return {
        "A_x": _A_in["x"],
        "A_wqkv": _A_in["wqkv"],
        "A_wo": _A_in["wo"],
        "B_x": _B_in["x"],
        "B_w_gate": _B_in["w_gate"],
        "B_w_up": _B_in["w_up"],
        "B_w_down": _B_in["w_down"],
    }

def reference(A_x, A_wqkv, A_wo, B_x, B_w_gate, B_w_up, B_w_down):
    def _A_ref(x, wqkv, wo):
        B, S, D = x.shape
        H = 32; Dh = D // H
        W, dil = 8, 2
        qkv = (lambda x, *d: x.permute(*d))((x @ wqkv).reshape(B, S, 3, H, Dh), 2, 0, 3, 1, 4)
        q, k, v = qkv[0], qkv[1], qkv[2]
        scale = Dh ** -0.5
        pos = torch.arange(S)
        off = torch.arange(W) * dil
        idx = pos[:, None] - off[None, :]
        mask = idx >= 0
        idx_c = torch.where(mask, idx, 0).reshape(-1)
        kg = k[:, :, idx_c, :].reshape(B, H, S, W, Dh)
        vg = v[:, :, idx_c, :].reshape(B, H, S, W, Dh)
        logits = torch.einsum("bhsd,bhswd->bhsw", q, kg) * scale
        logits = torch.where(mask[None, None, :, :], logits, -1e9)
        attn = _softmax(logits, axis=-1)
        o = torch.einsum("bhsw,bhswd->bhsd", attn, vg)
        return (lambda x, *d: x.permute(*d))(o, 0, 2, 1, 3).reshape(B, S, D) @ wo

    def _B_ref(x, w_gate, w_up, w_down):
        return (_gelu(x @ w_gate) * (x @ w_up)) @ w_down

    x = A_x
    x = x + _A_ref(_layernorm(x, axis=-1), A_wqkv, A_wo)
    x = x + _B_ref(_layernorm(x, axis=-1), B_w_gate, B_w_up, B_w_down)
    x = x + _A_ref(_layernorm(x, axis=-1), A_wqkv, A_wo)
    x = x + _B_ref(_layernorm(x, axis=-1), B_w_gate, B_w_up, B_w_down)
    return x
```

```python
import re

_R1 = re.compile(r'^(-)?(?:abs\()?([vas])(\d+)\)?$')
_R2 = re.compile(r'^(-)?(?:abs\()?([vas])\[(\d+):(\d+)\]\)?$')

def opregs(op):
    op = op.strip()
    m = _R1.match(op)
    if m:
        return [(m.group(2), int(m.group(3)))]
    m = _R2.match(op)
    if m:
        return [(m.group(2), i) for i in range(int(m.group(3)), int(m.group(4)) + 1)]
    if op == 'vcc':
        return [('s', 106), ('s', 107)]
    if op == 'exec':
        return [('s', 126), ('s', 127)]
    if op == 'm0':
        return [('s', 124)]
    return []

TRANS = ('v_exp_f32', 'v_log_f32', 'v_rcp_f32', 'v_rsq_f32', 'v_sqrt_f32', 'v_sin_f32', 'v_cos_f32')
NO_DST_S = ('s_cmp', 's_waitcnt', 's_barrier', 's_nop', 's_branch', 's_cbranch', 's_endpgm', 's_sleep', 's_setprio',
            's_bitcmp')

class Ins:
    __slots__ = ('text', 'mn', 'ops', 'mods', 'defs', 'uses', 'kind', 'tag', 'passes', 'srcc', 'srcab', 'wide_store',
                 'note')
    def __init__(self, text, tag=None):
        self.text = text
        self.tag = tag
        self.note = None
        parts = text.split(None, 1)
        self.mn = mn = parts[0]
        rest = parts[1] if len(parts) > 1 else ''
        ops = [o.strip() for o in rest.split(',')] if rest else []
        mods = ''
        if ops:
            last = ops[-1].split(None, 1)
            ops[-1] = last[0]
            mods = last[1] if len(last) > 1 else ''
        self.ops, self.mods = ops, mods
        self.passes = 0
        self.srcc = self.srcab = ()
        self.wide_store = False
        R = [opregs(o) for o in ops]
        flat = lambda l: [r for x in l for r in x]
        base = mn.replace('_e32', '').replace('_e64', '')
        if base.startswith('v_mfma'):
            self.kind = 'mfma'
            self.defs = R[0]; self.uses = flat(R[1:])
            self.srcab = R[1] + R[2]; self.srcc = R[3]
            self.passes = 8 if '32x32' in base else 4
        elif base.startswith('v_'):
            self.kind = 'trans' if base in TRANS else 'valu'
            if base.startswith('v_permlane') and 'swap' in base:
                self.defs = flat(R); self.uses = flat(R); self.kind = 'permlane'
            elif base in ('v_fmac_f32', 'v_dot2c_f32_bf16'):
                self.defs = R[0]; self.uses = flat(R)
            elif base in ('v_add_co_u32', 'v_addc_co_u32', 'v_sub_co_u32'):
                self.defs = R[0] + R[1]; self.uses = flat(R[2:])
            elif base == 'v_nop':
                self.defs = []; self.uses = []
            else:
                self.defs = R[0]; self.uses = flat(R[1:])
                if base in ('v_readfirstlane_b32', 'v_readlane_b32'):
                    self.kind = 'readlane'
            if 'dpp' in mn or 'row_' in mods or 'quad_perm' in mods:
                self.kind = 'dpp'
                self.uses = self.uses + self.defs
        elif base.startswith('ds_'):
            self.kind = 'ds'
            if base.startswith('ds_read') or base.startswith('ds_bpermute') or base.startswith('ds_swizzle'):
                self.defs = R[0]; self.uses = flat(R[1:])
            else:
                self.defs = []; self.uses = flat(R)
        elif base.startswith('buffer_') or base.startswith('global_'):
            self.kind = 'vmem'
            toks = mods.split()
            if 'load' in base:
                if 'lds' in toks or '_lds_' in base:
                    self.defs = []; self.uses = flat(R) + [('s', 124)]; self.kind = 'dma'
                else:
                    self.defs = R[0]; self.uses = flat(R[1:])
            elif 'atomic' in base:
                self.uses = flat(R); self.defs = R[0] if 'sc0' in toks else []
            else:
                self.defs = []; self.uses = flat(R)
                if base.endswith('x4') or base.endswith('x3'):
                    self.wide_store = True
        elif base.startswith('s_load') or base in ('s_memtime', 's_memrealtime'):
            self.kind = 'smem'
            self.defs = R[0]; self.uses = flat(R[1:])
        elif base.startswith('s_'):
            self.kind = 'salu'
            if any(base.startswith(p) for p in NO_DST_S):
                self.defs = []; self.uses = flat(R)
            else:
                self.defs = R[0]; self.uses = flat(R[1:])
                if 'saveexec' in base:
                    self.defs = self.defs + opregs('exec')
        else:
            raise ValueError("unknown instr " + text)
    def is_valu(self):
        return self.kind in ('valu', 'trans', 'permlane', 'dpp', 'readlane')

class Dir:
    def __init__(self, what, arg=None):
        self.what, self.arg = what, arg

class Prog:
    def __init__(self):
        self.items = []
    def I(self, text, tag=None):
        ins = Ins(text, tag)
        self.items.append(ins)
        return ins
    def add(self, items):
        for it in items:
            self.items.append(it)
    def label(self, name):
        self.items.append(Dir('label', name))
    def comment(self, t):
        self.items.append(Dir('raw', '; ' + t))
    def wait_vm(self, tag):
        self.items.append(Dir('wait_vm', tag))
    def wait_lgkm0(self):
        self.items.append(Dir('wait_lgkm0'))
    def assume_vm_state_kept(self):
        pass

def wait_pass(items):
    out = []
    vm = []
    lg = []
    def emit(vn, ln):
        parts = []
        if vn is not None:
            vn = min(vn, 63)
            parts.append(f'vmcnt({vn})')
            del vm[:len(vm) - vn]
        if ln is not None:
            ln = min(ln, 15)
            parts.append(f'lgkmcnt({ln})')
            del lg[:len(lg) - ln]
        if parts:
            out.append(Ins('s_waitcnt ' + ' '.join(parts)))
    for it in items:
        if isinstance(it, Dir):
            if it.what == 'wait_vm':
                tags = it.arg if isinstance(it.arg, (list, tuple, set)) else [it.arg]
                idx = [i for i, (d, t) in enumerate(vm) if t in tags]
                if idx:
                    emit(len(vm) - 1 - max(idx), None)
            elif it.what == 'wait_lgkm0':
                if lg:
                    emit(None, 0)
            elif it.what == 'drained':
                vm.clear()
            else:
                out.append(it)
            continue
        if it.tag == 'opaque':
            out.append(it)
            continue
        if it.mn == 's_waitcnt':
            m = re.search(r'vmcnt\((\d+)\)', it.text)
            if m:
                n = int(m.group(1)); del vm[:max(0, len(vm) - n)]
            m = re.search(r'lgkmcnt\((\d+)\)', it.text)
            if m:
                n = int(m.group(1)); del lg[:max(0, len(lg) - n)]
            out.append(it)
            continue
        touched = set(it.uses) | set(it.defs)
        vn = ln = None
        for i, (d, t) in enumerate(vm):
            if d & touched:
                vn = len(vm) - 1 - i
        for i, (d, sm) in enumerate(lg):
            if d & touched:
                ln = len(lg) - 1 - i
        if ln is not None and any(sm for d, sm in lg):
            ln = 0
        emit(vn, ln)
        if it.kind in ('vmem', 'dma'):
            assert len(vm) < 63, "too many outstanding VMEM ops at " + it.text
            vm.append((set(it.defs), it.tag))
        elif it.kind == 'ds':
            if len(lg) >= 15:
                emit(None, 14)
            lg.append((set(it.defs), False))
        elif it.kind == 'smem':
            lg.append((set(it.defs), True))
        out.append(it)
    return out

def _states(ins):
    if ins.mn == 's_nop':
        return int(ins.ops[0], 0) + 1
    return 1

def need_states(p, c):
    n = 0
    pd = set(p.defs)
    cu, cd = set(c.uses), set(c.defs)
    if p.kind == 'mfma':
        big = 12 if p.passes == 8 else 8
        if c.kind == 'mfma':
            if pd & set(c.srcab):
                n = max(n, big)
            if pd & set(c.srcc):
                if not (list(p.defs) == list(c.srcc) and p.passes == c.passes):
                    n = max(n, 10 if p.passes == 8 else 6)
            elif pd & cd:
                n = max(n, big)
        elif c.is_valu() or c.kind in ('vmem', 'ds', 'dma'):
            if pd & (cu | cd):
                n = max(n, big)
        if c.is_valu() and (set(p.srcc) & cd):
            n = max(n, 7 if p.passes == 8 else 3)
    if p.is_valu():
        pv = {r for r in pd if r[0] in 'va'}
        ps = {r for r in pd if r[0] == 's'}
        if c.kind == 'mfma' and pv & cu:
            n = max(n, 2)
        if c.kind in ('permlane', 'dpp') and pv & cu:
            n = max(n, 2)
        if c.kind == 'readlane' and pv & cu:
            n = max(n, 1)
        if p.kind == 'trans' and c.is_valu() and pv & cu:
            n = max(n, 1)
        if p.kind == 'trans' and c.kind in ('vmem', 'ds', 'dma') and pv & cu:
            n = max(n, 1)
        if p.mn.startswith('v_dot2') and (pv & (cu | cd)):
            if not (c.mn == p.mn and not (pv & set(opregs(c.ops[1]) + opregs(c.ops[2])))):
                n = max(n, 3)
        if ps:
            if c.is_valu() and ps & cu:
                n = max(n, 4 if c.kind == 'readlane' else 2)
            if c.kind in ('vmem', 'dma') and ps & cu:
                n = max(n, 5)
            if c.kind == 'salu' and ps & cu:
                n = max(n, 1)
            if c.mn.startswith('s_cbranch_vcc') and ('s', 106) in ps:
                n = max(n, 1)
    if p.kind == 'salu' and ('s', 124) in pd and c.kind == 'dma':
        n = max(n, 1)
    if p.wide_store and c.is_valu():
        data = set(opregs(p.ops[0] if p.mn.startswith('buffer') else p.ops[1]))
        if data & cd:
            n = max(n, 2)
    if p.wide_store and c.kind in ('ds', 'vmem'):
        data = set(opregs(p.ops[0] if p.mn.startswith('buffer') else p.ops[1]))
        if data & cd:
            n = max(n, 1)
    return n

def hazard_pass(items):
    out = []
    hist = []
    for it in items:
        if isinstance(it, Dir):
            out.append(it)
            continue
        need = 0
        dist = 0
        for p in reversed(hist):
            r = need_states(p, it)
            if r > dist:
                need = max(need, r - dist)
            dist += _states(p)
            if dist >= 12:
                break
        while need > 0:
            k = min(need, 16)
            nop = Ins(f's_nop {k-1}')
            out.append(nop); hist.append(nop)
            need -= k
        out.append(it); hist.append(it)
        if len(hist) > 16:
            del hist[0]
    return out

def render(items):
    lines = []
    for it in items:
        if isinstance(it, Dir):
            if it.what == 'label':
                lines.append(f'{it.arg}:')
            elif it.what == 'raw':
                lines.append(it.arg)
        else:
            lines.append('  ' + it.text)
    return '\n'.join(lines)

def interleave(main, fill, start=0, per=None, end=None):
    n = len(main)
    end = n if end is None else end
    out = []
    k = 0
    nslots = max(1, end - start)
    for i, g in enumerate(main):
        out.extend(g)
        if start <= i < end:
            if per is not None:
                tgt = min(len(fill), k + per)
            else:
                tgt = (len(fill) * (i - start + 1) + nslots - 1) // nslots
            out.extend(fill[k:tgt]); k = max(k, tgt)
    out.extend(fill[k:])
    return out
```

```python
import sys, math
from asmlib import *

NAME = "interleave_layers__sliding_local_dilated__geglu_ffn__prompt"
STAMPS = False
STOP = 99

FT   = 0x0
STMP = 0x10000
CSP  = 0x50000
WGU  = 0x90000
GB0  = 0x600000
GSZ  = 0x400000
FA   = 0x0
FB   = 0x100
ST   = [0x8000, 0x10000, 0x18000]
OF   = [0x40000, 0x80000]
X1F  = [0xC0000, 0x100000]
X2F  = 0x140000
HF   = [0x180000, 0x260000]
WS_BYTES = GB0 + 8 * GSZ

SLOT = 16384
SCR  = 9 * SLOT
TAB  = SCR
CS3  = SCR + 1024
PART = SCR + 2048

SX, SWQ, SWO, SWG, SWU, SWD, SOUT, SDBG, SWS, STR = [f's[{8+4*i}:{11+4*i}]' for i in range(10)]
sLin, sTb, sCb, sRb, sFs, sW, sGB, sM0W = [f's{48+i}' for i in range(8)]
sWoB, sWdB, sWqB, sX0B, sGuB, sX2B, sX0H, sX2H = [f's{56+i}' for i in range(8)]
sT0, sT1, sT2, sT3, sCnt = 's3', 's4', 's5', 's6', 's7'
sF8, sF16, sFH, sFown, sTok64, sTok32, sStH, sCap = [f's{64+i}' for i in range(8)]
sPar, sM0, sM1, sHi, sEx = 's[72:73]', 's[74:75]', 's[76:77]', 's[78:79]', 's[80:81]'
sRM, sTh, sKh, sC0, sC1, sC2 = 's82', 's83', 's84', 's85', 's86', 's87'
sStamp = 's[88:89]'
sPC = 's[90:91]'

vLane, vL16, vL4, vDmaW, vTrA, vTrB = 'v1', 'v2', 'v3', 'v4', 'v5', 'v6'
vF64, vF224, vS64, vS224, vOffO, vRM = 'v7', 'v8', 'v9', 'v10', 'v11', 'v12'
vP8, vP16 = 'v13', 'v14'
vMC0, vMC1, vMP0, vMP1 = 'v15', 'v16', 'v17', 'v18'
vCsV = 'v19'
CSQ, CSK, ONES, RES = 20, 24, 28, 32
vStamp = 'v191'
vTabN, vTabG = 'v189', 'v190'

def v(i, n=1):
    return f'v{i}' if n == 1 else f'v[{i}:{i+n-1}]'
def a(i, n=1):
    return f'a{i}' if n == 1 else f'a[{i}:{i+n-1}]'
def actreg(j):
    return v(192 + 4 * j, 4) if j < 16 else a(192 + 4 * (j - 16), 4)

class G:
    def __init__(self):
        self.P = Prog()
        self.nlab = 0
        self.nstamp = 0
    def lab(self, s):
        self.nlab += 1
        return f'L_{s}_{self.nlab}'
    def stamp(self, out=None):
        if not STAMPS:
            return
        I = self.P.I if out is None else (lambda t: out.append(Ins(t)))
        I(f's_memtime {sStamp}')
        I('s_waitcnt lgkmcnt(0)')
        I(f'v_writelane_b32 {vStamp}, s88, {self.nstamp}')
        self.nstamp += 1

    def dma(self, kind, idx, slot, tag):
        o = []
        I = lambda t, tg=None: o.append(Ins(t, tg))
        I(f's_add_u32 m0, {sM0W}, {slot*SLOT}')
        if kind in ('gu', 'x2', 'x2h'):
            if kind == 'gu':
                I(f's_add_u32 {sT3}, {sGuB}, {idx*SLOT}')
                so = sT3
            elif kind == 'x2':
                I(f's_add_u32 {sT3}, {sX2B}, {idx*SLOT}')
                so = sT3
            else:
                so = sX2H
            for i in range(4):
                I(f'buffer_load_dwordx4 {vL16}, {SWS}, {so} offen offset:{i*1024} sc1 lds', tag)
        elif kind in ('wo', 'wd'):
            srd, base = (SWO, sWoB) if kind == 'wo' else (SWD, sWdB)
            for i in range(4):
                I(f's_add_u32 {sT3}, {base}, {(64*idx+8*i)*1024 - 1024*i}')
                I(f'buffer_load_dwordx4 {vDmaW}, {srd}, {sT3} offen offset:{i*1024} lds', tag)
        elif kind == 'wq':
            mu, q = idx // 4, idx % 4
            for i in range(4):
                I(f's_add_u32 {sT3}, {sWqB}, {(128*q+8*i)*3072 + mu*1024 - 1024*i}')
                I(f'buffer_load_dwordx4 {"v61" if i & 1 else "v60"}, {SWQ}, {sT3} offen offset:{i*1024} lds', tag)
        elif kind == 'x0':
            base = sX0H if idx == 0 else sX0B
            off = 0 if idx == 0 else (idx - 1) * 16 * 1024
            for i in range(4):
                if i:
                    I(f's_add_u32 m0, {sM0W}, {slot*SLOT + i*1024}')
                I(f's_add_u32 {sT3}, {base}, {off + (i >> 1)*128 + (i & 1)*8192}')
                I(f'buffer_load_dwordx4 v62, {SX}, {sT3} offen lds', tag)
        else:
            raise ValueError(kind)
        return o

    def poll(self, vpoll, sbase, phase, vF='v48', vG='v49'):
        P = self.P
        L, D = self.lab('poll'), self.lab('pdone')
        O = lambda t: P.I(t, 'opaque')
        P.I(f's_mov_b32 {sCnt}, 0')
        P.label(L)
        O(f'buffer_load_dword {vF}, {vpoll}, {SWS}, {sbase} offen sc1')
        O(f's_add_u32 {sCnt}, {sCnt}, 1')
        O('s_waitcnt vmcnt(0)')
        O(f'v_cmp_gt_u32 vcc, {phase}, {vF}')
        O(f's_and_b32 {sT0}, {sCnt}, 3')
        O(f's_cbranch_vccz {D}')
        O(f's_cbranch_scc1 {L}')
        O(f'buffer_load_dword {vG}, {vpoll}, {SWS}, {sbase} offen offset:{FB} sc1')
        O('s_waitcnt vmcnt(0)')
        O(f'v_max_u32 {vF}, {vF}, {vG}')
        O(f'v_cmp_gt_u32 vcc, {phase}, {vF}')
        O(f's_cmp_lt_u32 {sCnt}, 0x40000')
        O(f's_cbranch_vccz {D}')
        O(f's_cbranch_scc1 {L}')
        P.label(D)
        P.items.append(Dir('drained'))

    def publish(self, tags, phase):
        P = self.P
        P.wait_vm(tags)
        P.I('s_barrier')
        S = self.lab('pub')
        O = lambda t: P.I(t, 'opaque')
        P.I(f's_cmp_lg_u32 {sW}, 0')
        P.I(f's_cbranch_scc1 {S}')
        O(f'v_mov_b32 v48, {phase}')
        O('s_mov_b64 exec, 1')
        O(f'buffer_store_dword v48, {vL4}, {SWS}, {sFown} offen')
        O(f'buffer_store_dword v48, {vL4}, {SWS}, {sFown} offen offset:{FB} sc1')
        O('s_mov_b64 exec, -1')
        P.label(S)

    def stats_finish(self, o, vS, vT, vMean, vIv, vRs):
        I = lambda t: o.append(Ins(t))
        I(f'v_mov_b32 {vT}, {vS}')
        I(f'v_permlane32_swap_b32 {vS}, {vT}')
        I(f'v_mul_f32 {vMean}, 0x3b000000, {vS}')
        I(f'v_mul_f32 {vT}, 0x3b000000, {vT}')
        I(f'v_fma_f32 {vT}, -{vMean}, {vMean}, {vT}')
        I(f'v_max_f32 {vT}, 0, {vT}')
        I(f'v_add_f32 {vIv}, 0x3727c5ac, {vT}')
        I(f'v_rsq_f32 {vRs}, {vIv}')

    def stats_loads(self, o, base_reg, soff):
        for p in range(16):
            o.append(Ins(f'buffer_load_dword {v(base_reg+p)}, {vL4}, {SWS}, {soff} offen offset:{p*256} sc1'))
    def tree_add(self, o, base_reg, n):
        step = 1
        while step < n:
            for i in range(0, n, 2 * step):
                o.append(Ins(f'v_add_f32 {v(base_reg+i)}, {v(base_reg+i)}, {v(base_reg+i+step)}'))
            step *= 2

    def prologue(self):
        P = self.P; I = P.I
        I('s_cmp_ge_u32 s2, 256')
        I('s_cbranch_scc1 L_end')
        I('s_load_dwordx16 s[64:79], s[0:1], 0')
        I('s_load_dwordx4 s[80:83], s[0:1], 64')
        I(f's_getpc_b64 {sPC}')
        if STAMPS:
            I(f'v_mov_b32 {vStamp}, 0')
        I(f's_and_b32 {sT0}, s2, 7')
        I(f's_lshr_b32 {sT1}, s2, 3')
        I(f's_lshl_b32 {sLin}, {sT0}, 5')
        I(f's_add_u32 {sLin}, {sLin}, {sT1}')
        I(f's_lshr_b32 {sTb}, {sLin}, 3')
        I(f's_and_b32 {sCb}, {sLin}, 7')
        I(f's_lshr_b32 {sRb}, {sLin}, 4')
        I(f's_and_b32 {sFs}, {sLin}, 15')
        I(f's_mul_i32 {sGB}, {sT0}, {GSZ}')
        I(f's_add_u32 {sGB}, {sGB}, {GB0}')
        I(f'v_and_b32 {vLane}, 63, v0')
        I('v_lshrrev_b32 v48, 6, v0')
        I(f'v_readfirstlane_b32 {sW}, v48')
        I(f's_lshl_b32 {sT1}, {sT1}, 11')
        I('v_lshlrev_b32 v49, 3, v0')
        I(f'v_add_u32 v49, {sT1}, v49')
        I(f'global_load_dwordx2 v[50:51], v49, {sPC}', 'pf')
        I(f'v_lshlrev_b32 {vL16}, 4, {vLane}')
        I(f'v_lshlrev_b32 {vL4}, 2, {vLane}')
        I(f's_lshl_b32 {sM0W}, {sW}, 12')
        I(f'v_lshrrev_b32 v52, 3, {vLane}')
        I(f'v_and_b32 v53, 7, {vLane}')
        I(f'v_bfe_u32 v54, {vLane}, 4, 1')
        I(f'v_lshrrev_b32 v55, 5, {vLane}')
        I(f'v_and_b32 v56, 15, {vLane}')
        I(f'v_lshrrev_b32 v57, 4, {vLane}')
        I('v_lshlrev_b32 v58, 2, v54')
        I('v_xor_b32 v58, v53, v58')
        I('v_lshlrev_b32 v58, 4, v58')
        I(f'v_lshl_add_u32 {vDmaW}, v52, 10, v58')
        I('v_lshlrev_b32 v58, 1, v54')
        I('v_xor_b32 v58, v53, v58')
        I('v_lshlrev_b32 v58, 4, v58')
        I('v_mul_u32_u24 v59, 3072, v52')
        I('v_add_u32 v60, v59, v58')
        I('v_xor_b32 v61, 64, v60')
        I('v_xor_b32 v58, v53, v52')
        I('v_lshlrev_b32 v58, 4, v58')
        I('v_lshl_add_u32 v62, v52, 10, v58')
        I('v_mul_u32_u24 v59, 3584, v57')
        I('v_lshl_add_u32 v63, v56, 4, v59')
        I('s_waitcnt lgkmcnt(0)')
        sizes = [2048*1024, 512*3072, 512*1024, None, 512*3584, 512*3584, 1792*1024, 2048*1024, 256, WS_BYTES]
        srds = [8, 12, 16, None, 20, 24, 28, 32, 36, 40]
        for i, (sz, r) in enumerate(zip(sizes, srds)):
            if r is None:
                continue
            I(f's_mov_b32 s{r}, s{64+2*i}')
            I(f's_mov_b32 s{r+1}, s{65+2*i}')
            I(f's_mov_b32 s{r+2}, {sz}')
            I(f's_mov_b32 s{r+3}, 0x20000')
        I(f's_and_b32 {sTh}, {sW}, 1')
        I(f's_lshr_b32 {sKh}, {sW}, 1')
        I(f's_cmp_eq_u32 {sKh}, 0')
        I('s_cselect_b32 s44, s20, s24')
        I('s_cselect_b32 s45, s21, s25')
        I(f's_mov_b32 s46, {512*3584}')
        I('s_mov_b32 s47, 0x20000')
        I(f's_and_b32 {sT0}, {sLin}, 31')
        I(f's_lshl_b32 {sT0}, {sT0}, 2')
        I(f's_add_u32 {sFown}, {sGB}, {sT0}')
        I(f's_and_b32 {sT1}, {sT0}, {24*4}')
        I(f's_add_u32 {sF8}, {sGB}, {sT1}')
        I(f's_and_b32 {sT1}, {sT0}, {16*4}')
        I(f's_add_u32 {sF16}, {sGB}, {sT1}')
        L = self.lab('z')
        I(f's_lshl_b32 {sT1}, {sFs}, 6')
        I(f's_lshl_b32 {sT2}, {sRb}, 2')
        I(f's_add_u32 {sC2}, {sT1}, {sT2}')
        I(f's_cmp_lg_u32 {sW}, 0')
        I(f's_cbranch_scc1 {L}')
        O = lambda t: P.I(t, 'opaque')
        O('v_mov_b32 v48, 0')
        O('s_mov_b64 exec, 1')
        O(f'buffer_store_dword v48, {vL4}, {SWS}, {sFown} offen sc1')
        O(f'buffer_store_dword v48, {vL4}, {SWS}, {sFown} offen offset:{FB} sc1')
        O(f'buffer_store_dword v48, {vL4}, {SWS}, {sC2} offen sc1')
        O('s_mov_b64 exec, -1')
        P.label(L)
        I(f's_lshl_b32 {sT0}, {sRb}, 5')
        I(f's_lshl_b32 {sT1}, {sTh}, 4')
        I(f's_add_u32 {sT0}, {sT0}, {sT1}')
        I(f's_mul_i32 {sT0}, {sT0}, 3584')
        I(f's_mul_i32 {sT1}, {sFs}, 224')
        I(f's_add_u32 {sT0}, {sT0}, {sT1}')
        I(f's_add_u32 m0, {sM0W}, {SCR}')
        for i in range(4):
            I(f's_add_u32 {sT3}, {sT0}, {i*(4*3584-1024)}')
            I(f'buffer_load_dwordx4 v63, {STR}, {sT3} offen offset:{i*1024} lds', 'tr')
        I(f's_lshl_b32 {sT0}, {sCb}, 7')
        I(f's_mul_i32 {sWqB}, {sW}, {32*3072}')
        I(f's_add_u32 {sWqB}, {sWqB}, {sT0}')
        I(f's_lshl_b32 {sT1}, {sTh}, 15')
        I(f's_add_u32 {sT1}, {sT1}, {sT0}')
        I(f's_lshl_b32 {sWoB}, {sKh}, 18')
        I(f's_add_u32 {sWoB}, {sWoB}, {sT1}')
        I(f's_mul_i32 {sWdB}, {sKh}, {896*1024}')
        I(f's_add_u32 {sWdB}, {sWdB}, {sT1}')
        I(f's_lshl_b32 {sX0B}, {sTb}, 16')
        I(f's_lshl_b32 {sT1}, {sW}, 8')
        I(f's_add_u32 {sX0B}, {sX0B}, {sT1}')
        I(f's_cmp_eq_u32 {sTb}, 0')
        I(f's_cselect_b32 {sT1}, 0, 16384')
        I(f's_sub_u32 {sX0H}, {sX0B}, {sT1}')
        for c in range(4):
            P.add(self.dma('wq', c, 5 + c, f'wq{c}'))
        for T in (1, 2, 3, 4, 0):
            P.add(self.dma('x0', T, (T + 4) % 5, f'x{T}'))
        I(f's_mul_i32 {sGuB}, {sFs}, {14*SLOT}')
        I(f's_add_u32 {sGuB}, {sGuB}, {sM0W}')
        I(f's_add_u32 {sGuB}, {sGuB}, {WGU}')
        I(f's_and_b32 {sT0}, {sTb}, 3')
        I(f's_lshl_b32 {sTok64}, {sT0}, 2')
        I(f's_lshl_b32 {sX2B}, {sT0}, 16')
        I(f's_add_u32 {sX2B}, {sX2B}, {sGB}')
        I(f's_add_u32 {sX2B}, {sX2B}, {sM0W}')
        I(f's_add_u32 {sX2B}, {sX2B}, {X2F}')
        I(f's_cmp_eq_u32 {sT0}, 0')
        I(f's_movk_i32 {sT1}, {SLOT}')
        I(f's_movk_i32 {sT3}, 4096')
        I(f's_cselect_b32 {sT1}, {GSZ - 15*SLOT}, {sT1}')
        I(f's_cselect_b32 {sT2}, {GSZ - 96}, 32')
        I(f's_cselect_b32 {sT3}, {GSZ - 7*4096}, {sT3}')
        I(f's_cmp_eq_u32 {sTb}, 0')
        I(f's_cselect_b32 {sT1}, 0, {sT1}')
        I(f's_cselect_b32 {sT2}, 0, {sT2}')
        I(f's_cselect_b32 {sT3}, 0, {sT3}')
        I(f's_mov_b32 {sCap}, 0x7f800000')
        I(f's_cselect_b32 {sCap}, 0xf149f2ca, {sCap}')
        I(f's_sub_u32 {sX2H}, {sX2B}, {sT1}')
        I(f's_sub_u32 {sFH}, {sF8}, {sT2}')
        I(f's_lshl_b32 {sT0}, {sT0}, 13')
        I(f's_add_u32 {sT0}, {sT0}, {sGB}')
        I(f's_add_u32 {sT0}, {sT0}, {ST[1]}')
        I(f's_sub_u32 {sStH}, {sT0}, {sT3}')
        I(f's_lshl_b32 {sRM}, {sTb}, 16')
        I(f's_lshl_b32 {sT0}, {sTh}, 15')
        I(f's_add_u32 {sRM}, {sRM}, {sT0}')
        I(f's_lshl_b32 {sT0}, {sCb}, 7')
        I(f's_add_u32 {sRM}, {sRM}, {sT0}')
        I(f's_lshl_b32 {sT0}, {sKh}, 6')
        I(f's_add_u32 {sRM}, {sRM}, {sT0}')
        I(f'v_and_b32 v58, 31, {vLane}')
        I('v_lshlrev_b32 v58, 10, v58')
        I(f'v_lshl_add_u32 {vRM}, v55, 5, v58')
        I(f'buffer_load_dwordx4 v[64:67], {vRM}, {SX}, {sRM} offen')
        I(f'buffer_load_dwordx4 v[68:71], {vRM}, {SX}, {sRM} offen offset:16')
        I('v_lshlrev_b32 v58, 4, v56')
        I('v_lshl_add_u32 v59, v55, 8, v58')
        I(f'v_lshl_add_u32 {vF64}, v54, 14, v59')
        I(f'v_mul_u32_u24 v48, {224*256}, v54')
        I(f'v_add_u32 {vF224}, v48, v59')
        I('v_lshl_add_u32 v59, v55, 9, v58')
        I(f'v_lshl_add_u32 {vS64}, v54, 14, v59')
        I(f'v_add_u32 {vS224}, v48, v59')
        I('v_lshl_add_u32 v59, v55, 8, v58')
        I(f'v_lshl_add_u32 {vOffO}, v54, 3, v59')
        I(f'v_lshlrev_b32 {vP8}, 2, v53')
        I(f'v_lshlrev_b32 {vP16}, 2, v56')
        I(f'v_bfe_u32 v72, {vLane}, 2, 2')
        I(f'v_and_b32 v73, 3, {vLane}')
        I('v_and_b32 v74, 1, v73')
        I('v_lshlrev_b32 v74, 2, v74')
        I('v_lshl_add_u32 v74, v54, 1, v74')
        I('v_lshrrev_b32 v75, 1, v73')
        I('v_add_u32 v74, v74, v75')
        I('v_lshl_add_u32 v76, v55, 3, v72')
        I(f's_lshl_b32 {sT0}, {sKh}, 13')
        I('v_lshlrev_b32 v77, 7, v76')
        I('v_lshl_add_u32 v77, v74, 3, v77')
        I(f'v_add_u32 v77, {sT0}, v77')
        I('v_lshrrev_b32 v78, 1, v72')
        I(f'v_xor_b32 v78, {sKh}, v78')
        I(f'v_lshl_add_u32 {vTrA}, v78, 6, v77')
        I(f'v_xor_b32 {vTrB}, 64, {vTrA}')
        I(f'v_and_b32 v78, 1, {vLane}')
        I(f'v_cmp_eq_u32 {sPar}, 1, v78')
        I('v_lshl_add_u32 v79, v57, 2, v78')
        I(f'v_cmp_le_u32 {sM0}, v79, v56')
        I('v_add_u32 v79, 2, v79')
        I(f'v_cmp_le_u32 {sM1}, v79, v56')
        I(f'v_cmp_le_u32 {sHi}, 32, {vLane}')
        I('v_mov_b32 v79, 0xffff')
        I('v_mov_b32 v80, 0xffff0000')
        I(f'v_cndmask_b32 v79, v79, v80, {sPar}')
        I(f'v_cndmask_b32 {vMC0}, 0, v79, {sM0}')
        I(f'v_cndmask_b32 {vMC1}, 0, v79, {sM1}')
        I(f'v_xor_b32 {vMP0}, v79, {vMC0}')
        I(f'v_xor_b32 {vMP1}, v79, {vMC1}')
        for i in range(4):
            I(f'v_mov_b32 {v(ONES+i)}, 0x3f803f80')
        I(f'v_lshlrev_b32 {vTabN}, 2, v56')
        I(f'v_add_u32 {vTabN}, {TAB}, {vTabN}')
        I(f'v_lshlrev_b32 {vTabG}, 4, v57')
        I(f'v_add_u32 {vTabG}, {TAB}, {vTabG}')
        self.stamp()

        I('v_lshlrev_b32 v81, 8, v76')
        I(f'v_add_u32 v81, {SCR}, v81')
        I('v_lshl_add_u32 v82, v74, 3, v81')
        I(f's_lshl_b32 {sT0}, {sTh}, 13')
        I(f's_lshl_b32 {sT1}, {sKh}, 6')
        I(f's_add_u32 {sT1}, {sT1}, {sT0}')
        I(f'v_add_u32 v83, {sT1}, v82')
        I(f's_add_u32 {sT0}, {sT0}, 128')
        I(f'v_add_u32 v84, {sT0}, v82')
        I('v_and_b32 v85, 1, v73')
        I('v_lshl_add_u32 v85, v85, 1, v75')
        I('v_lshl_add_u32 v85, v85, 3, v81')
        I('v_lshl_add_u32 v85, v54, 13, v85')
        I('v_add_u32 v85, 192, v85')
        I(f's_cmp_lg_u32 {sKh}, 0')
        I(f's_cselect_b64 {sEx}, -1, 0')
        I(f'v_cndmask_b32 v84, v84, v85, {sEx}')
        I(f's_mul_i32 {sC0}, {sFs}, {14*SLOT}')
        I(f's_add_u32 {sC0}, {sC0}, {WGU}')
        I(f's_lshl_b32 {sT0}, {sRb}, 12')
        I(f's_lshl_b32 {sT1}, {sTh}, 10')
        I(f's_add_u32 {sT0}, {sT0}, {sT1}')
        I(f's_add_u32 {sT0}, {sT0}, {sC0}')
        I(f's_lshl_b32 {sT1}, {sKh}, 16')
        I(f's_add_u32 {sC1}, {sT0}, {sT1}')
        I(f's_add_u32 {sT0}, {sT0}, {2*65536}')
        I(f's_lshl_b32 {sT1}, {sRb}, 11')
        I(f's_add_u32 {sT1}, {sT1}, {sC0}')
        I(f's_add_u32 {sT1}, {sT1}, {12*SLOT}')
        I(f's_cmp_lg_u32 {sKh}, 0')
        I(f's_cselect_b32 {sC0}, {sT1}, {sT0}')
        I(f's_movk_i32 {sT2}, 2048')
        I(f's_cselect_b32 {sT2}, 1024, {sT2}')
        I(f's_add_u32 {sT2}, {sT2}, {sC0}')
        P.wait_vm('tr')
        I('s_barrier')
        L = self.lab('reg')
        I(f's_cmp_lg_u32 {sW}, 0')
        I(f's_cbranch_scc1 {L}')
        O('v_mov_b32 v48, 1')
        O(f's_lshr_b32 {sT0}, {sLin}, 5')
        O(f's_lshl_b32 {sT0}, {sT0}, 2')
        O('s_mov_b64 exec, 1')
        O(f'buffer_atomic_add v48, {vL4}, {SDBG}, {sT0} offen')
        O('s_mov_b64 exec, -1')
        P.label(L)
        for t, ad in ((0, 'v83'), (1, 'v84')):
            for ksl in range(2):
                b = 88 + 8 * t + 4 * ksl
                I(f'ds_read_b64_tr_b16 {v(b,2)}, {ad} offset:{ksl*4096}')
                I(f'ds_read_b64_tr_b16 {v(b+2,2)}, {ad} offset:{ksl*4096+1024}')
        I(f'buffer_store_dwordx4 v[88:91], {vL16}, {SWS}, {sC1} offen sc1', 'trs')
        I(f'buffer_store_dwordx4 v[92:95], {vL16}, {SWS}, {sC1} offen offset:2048 sc1', 'trs')
        I(f'buffer_store_dwordx4 v[96:99], {vL16}, {SWS}, {sC0} offen sc1', 'trs')
        I(f'buffer_store_dwordx4 v[100:103], {vL16}, {SWS}, {sT2} offen sc1', 'trs')
        on = v(ONES, 4)
        I(f'v_mfma_f32_32x32x16_bf16 v[112:127], v[88:91], {on}, 0')
        I(f'v_mfma_f32_32x32x16_bf16 v[128:143], v[96:99], {on}, 0')
        I(f'v_mfma_f32_32x32x16_bf16 v[112:127], v[92:95], {on}, v[112:127]')
        I(f'v_mfma_f32_32x32x16_bf16 v[128:143], v[100:103], {on}, v[128:143]')
        I(f's_lshl_b32 {sT0}, {sC2}, 8')
        I(f's_add_u32 {sT0}, {sT0}, {CSP}')
        I(f's_lshl_b32 {sT1}, {sW}, 7')
        I(f's_add_u32 {sT1}, {sT1}, {sT0}')
        I(f's_add_u32 {sT2}, {sW}, 4')
        I(f's_min_u32 {sT2}, {sT2}, 6')
        I(f's_lshl_b32 {sT2}, {sT2}, 7')
        I(f's_add_u32 {sT2}, {sT2}, {sT0}')
        I('v_lshlrev_b32 v86, 6, v55')
        I('s_mov_b32 exec_lo, 1')
        I('s_mov_b32 exec_hi, 1')
        for i in range(4):
            I(f'buffer_store_dwordx4 {v(112+4*i,4)}, v86, {SWS}, {sT1} offen offset:{16*i} sc1', 'trs')
        for i in range(4):
            I(f'buffer_store_dwordx4 {v(128+4*i,4)}, v86, {SWS}, {sT2} offen offset:{16*i} sc1', 'trs')
        I('s_mov_b64 exec, -1')
        for i in range(8):
            I(f'v_lshlrev_b32 {v(RES+2*i)}, 16, {v(64+i)}')
            I(f'v_and_b32 {v(RES+2*i+1)}, 0xffff0000, {v(64+i)}')
        I(f'v_bfe_u32 v81, {vLane}, 3, 1')
        I('v_xor_b32 v82, v57, v53')
        I('v_lshlrev_b32 v82, 4, v82')
        I('v_lshl_add_u32 v82, v53, 7, v82')
        I('v_lshl_add_u32 v186, v81, 10, v82')
        I('v_xor_b32 v187, 64, v186')
        I('v_lshl_add_u32 v81, v57, 3, v72')
        I('v_lshlrev_b32 v81, 7, v81')
        I('v_lshl_add_u32 v81, v73, 3, v81')
        I('v_lshrrev_b32 v82, 1, v72')
        I('v_lshl_add_u32 v82, v54, 1, v82')
        I(f'v_xor_b32 v82, {sW}, v82')
        I('v_lshl_add_u32 v188, v82, 5, v81')
        P.wait_vm('trs')
        I('s_barrier')
        L = self.lab('ft')
        I(f's_cmp_lg_u32 {sW}, 0')
        I(f's_cbranch_scc1 {L}')
        O('v_mov_b32 v48, 1')
        O('s_mov_b64 exec, 1')
        O(f'buffer_store_dword v48, {vL4}, {SWS}, {sC2} offen sc1')
        O('s_mov_b64 exec, -1')
        P.label(L)
        self.stamp()

    def load_wq(self):
        P = self.P; I = P.I
        on = v(ONES, 4)
        def reads(c):
            mu, q = c // 4, c % 4
            slot = 5 + c % 4
            I(f'v_add_u32 v48, {slot*SLOT}, v188')
            for ksl in range(4):
                b = ((4 * q + ksl) * 3 + mu) * 4
                I(f'ds_read_b64_tr_b16 {a(b,2)}, v48 offset:{ksl*4096}')
                I(f'ds_read_b64_tr_b16 {a(b+2,2)}, v48 offset:{ksl*4096+512}')
        def cs(c):
            mu, q = c // 4, c % 4
            acc = v([CSQ, CSK, 104][mu], 4)
            for ksl in range(4):
                b = ((4 * q + ksl) * 3 + mu) * 4
                c_in = '0' if (q == 0 and ksl == 0) else acc
                if mu < 2:
                    I(f'v_mfma_f32_16x16x32_bf16 {acc}, {a(b,4)}, {on}, {c_in}')
                else:
                    I(f'v_mfma_f32_16x16x32_bf16 {acc}, {on}, {a(b,4)}, {c_in}')
        for c in range(4):
            reads(c)
        P.wait_lgkm0()
        I('s_barrier')
        for c in range(4, 8):
            P.add(self.dma('wq', c, 5 + c % 4, f'wq{c}'))
        I(f'buffer_load_dword v110, {vP8}, {SDBG}, 0 offen sc1')
        for c in range(4):
            cs(c)
        I(f's_lshl_b32 {sT0}, {sW}, 12')
        for T in (1, 2, 3, 4, 0):
            slot = (T + 4) % 5
            I(f's_add_u32 {sT1}, {sT0}, {slot*SLOT}')
            I(f'v_add_u32 v48, {sT1}, v186')
            I(f'v_add_u32 v49, {sT1}, v187')
            for j in range(4):
                I(f'ds_read_b128 {v(112+4*j,4)}, {"v49" if j & 1 else "v48"} offset:{(j >> 1)*2048}')
            I('v_mov_b32 v50, 0')
            I('v_mov_b32 v51, 0')
            for j in range(16):
                I(f'v_dot2_f32_bf16 v50, {v(112+j)}, {v(ONES)}, v50')
                I(f'v_dot2_f32_bf16 v51, {v(112+j)}, {v(112+j)}, v51')
            I('s_nop 2')
            I('v_permlane32_swap_b32 v50, v51')
            I('v_add_f32 v50, v50, v51')
            I('v_mov_b32 v51, v50')
            I('v_permlane16_swap_b32 v50, v51')
            I('v_add_f32 v50, v50, v51')
            j0 = 80 if T == 0 else 16 * (T - 1)
            I(f's_mul_i32 {sT1}, {sW}, 768')
            I(f's_add_u32 {sT1}, {sT1}, {PART + (j0 >> 5)*256 + (j0 & 31)*4}')
            I(f'v_lshl_add_u32 v51, v55, 7, {vP16}')
            I(f'v_add_u32 v51, {sT1}, v51')
            I('ds_write_b32 v51, v50')
        P.wait_vm('wq7')
        P.wait_lgkm0()
        I('s_barrier')
        for c in range(4, 8):
            reads(c)
        I(f's_min_u32 {sT0}, {sW}, 2')
        I(f's_lshl_b32 {sT0}, {sT0}, 8')
        I(f's_add_u32 {sT1}, {sT0}, {PART}')
        I(f'v_add_u32 v49, {sT1}, {vL4}')
        for k in range(4):
            I(f'ds_read_b32 {v(112+k)}, v49 offset:{k*768}')
        P.wait_lgkm0()
        I('s_barrier')
        for c in range(8, 12):
            P.add(self.dma('wq', c, 5 + c % 4, f'wq{c}'))
        o = []
        self.tree_add(o, 112, 4)
        self.stats_finish(o, 'v112', 'v113', 'v114', 'v115', 'v116')
        P.add(o)
        I(f'v_cndmask_b32 v114, v114, v116, {sHi}')
        I(f's_add_u32 {sT1}, {sT0}, {TAB}')
        I(f'v_add_u32 v49, {sT1}, {vL4}')
        I('ds_write_b32 v49, v114')
        for c in range(4, 8):
            cs(c)
        L, D = self.lab('rc'), self.lab('rcd')
        O = lambda t: P.I(t, 'opaque')
        I('v_cmp_gt_u32 vcc, 32, v110')
        I(f's_mov_b32 {sCnt}, 0')
        I(f's_cbranch_vccz {D}')
        P.label(L)
        O(f'buffer_load_dword v110, {vP8}, {SDBG}, 0 offen sc1')
        O(f's_add_u32 {sCnt}, {sCnt}, 1')
        O('s_waitcnt vmcnt(0)')
        O('v_cmp_gt_u32 vcc, 32, v110')
        O(f's_cmp_lt_u32 {sCnt}, 0x40000')
        O(f's_cbranch_vccz {D}')
        O(f's_cbranch_scc1 {L}')
        P.label(D)
        I(f's_lshl_b32 {sC0}, {sFs}, 6')
        I(f'buffer_load_dword v110, {vP16}, {SWS}, {sC0} offen sc1')
        P.wait_vm('wq11')
        P.wait_lgkm0()
        I('s_barrier')
        for c in range(8, 12):
            reads(c)
        P.wait_lgkm0()
        I('s_barrier')
        for c in range(4):
            P.add(self.dma('wo', c, 5 + c, f'wo{c}'))
        for c in range(8, 12):
            cs(c)
        L, D = self.lab('fc'), self.lab('fcd')
        I('v_cmp_gt_u32 vcc, 1, v110')
        I(f's_mov_b32 {sCnt}, 0')
        I(f's_cbranch_vccz {D}')
        P.label(L)
        O(f'buffer_load_dword v110, {vP16}, {SWS}, {sC0} offen sc1')
        O(f's_add_u32 {sCnt}, {sCnt}, 1')
        O('s_waitcnt vmcnt(0)')
        O('v_cmp_gt_u32 vcc, 1, v110')
        O(f's_cmp_lt_u32 {sCnt}, 0x40000')
        O(f's_cbranch_vccz {D}')
        O(f's_cbranch_scc1 {L}')
        P.label(D)
        I(f'v_mov_b32 {vCsV}, v104')
        I(f's_lshl_b32 {sT0}, {sFs}, 14')
        I(f's_add_u32 {sT0}, {sT0}, {CSP}')
        I('v_lshlrev_b32 v49, 2, v0')
        for k in range(16):
            if k % 4 == 0 and k:
                I(f's_add_u32 {sT0}, {sT0}, 4096')
            I(f'buffer_load_dword {v(192+k)}, v49, {SWS}, {sT0} offen offset:{(k % 4)*1024} sc1')
        self.stamp()

    def p1(self, layer, refill):
        P = self.P; I = P.I
        ACC = [48, 60]; Q0, K0, V0 = 72, 80, 90
        SC, SP, PP = 100, 104, 108
        FR = 112
        MN, RS, M4, R4 = 136, 137, 140, 144
        SCL = 148
        T0 = 152
        OO, DD = 168, 172
        AD0, AD1 = 'v176', 'v177'
        order = [1, 2, 3, 4, 0]
        slot = lambda T: (T + 4) % 5
        on = v(ONES, 4)
        if layer == 1:
            self.poll(vP8, sF8, 4)
            self.stamp()
            for T in (1, 2, 3, 4):
                P.add(self.dma('x2', T - 1, slot(T), f'x{T}'))
            I(f's_lshl_b32 {sT0}, {sTok64}, 11')
            I(f's_lshl_b32 {sT1}, {sTh}, 12')
            I(f's_add_u32 {sT0}, {sT0}, {sT1}')
            I(f's_add_u32 {sT0}, {sT0}, {sGB}')
            I(f's_add_u32 {sT0}, {sT0}, {ST[1]}')
            o = []; self.stats_loads(o, 192, sT0); P.add(o)
            I(f'buffer_load_dword v180, {vP8}, {SWS}, {sFH} offen sc1')
            I(f'buffer_load_dword v181, {vP8}, {SWS}, {sFH} offen offset:{FB} sc1')
            P.wait_vm('x1')
            I('s_barrier')

        def rd(T, ks, buf):
            if layer == 0:
                return Ins(f'ds_read_b128 {v(FR+4*buf,4)}, {AD1 if ks & 1 else AD0} offset:{(ks >> 1)*2048}')
            return Ins(f'ds_read_b128 {v(FR+4*buf,4)}, {AD0} offset:{ks*1024}')
        def setaddr(T):
            if layer == 0:
                return [Ins(f'v_add_u32 {AD0}, {slot(T)*SLOT}, v186'), Ins(f'v_add_u32 {AD1}, {slot(T)*SLOT}, v187')]
            return [Ins(f'v_add_u32 {AD0}, {slot(T)*SLOT}, {vL16}')]

        def norm(T, acc):
            o = []; J = lambda t: o.append(Ins(t))
            j0 = 80 if T == 0 else 16 * (T - 1)
            dw = (j0 >> 5) * 64 + (j0 & 31)
            J(f'ds_read2_b32 {v(MN,2)}, {vTabN} offset0:{dw} offset1:{dw+32}')
            J(f'ds_read_b128 {v(M4,4)}, {vTabG} offset:{dw*4}')
            J(f'ds_read_b128 {v(R4,4)}, {vTabG} offset:{dw*4+128}')
            for r in range(4):
                J(f'v_fma_f32 {v(T0+r)}, -{v(MN)}, {v(CSK+r)}, {v(acc+4+r)}')
            for r in range(4):
                J(f'v_mul_f32 {v(T0+r)}, {v(T0+r)}, {v(RS)}')
            J(f'v_cvt_pk_bf16_f32 {v(K0+2*T)}, {v(T0)}, {v(T0+1)}')
            J(f'v_cvt_pk_bf16_f32 {v(K0+2*T+1)}, {v(T0+2)}, {v(T0+3)}')
            if T:
                for r in range(4):
                    J(f'v_fma_f32 {v(T0+4+r)}, -{v(MN)}, {v(CSQ+r)}, {v(acc+r)}')
                J(f'v_cvt_pk_bf16_f32 {v(Q0+2*(T-1))}, {v(T0+4)}, {v(T0+5)}')
                J(f'v_cvt_pk_bf16_f32 {v(Q0+2*(T-1)+1)}, {v(T0+6)}, {v(T0+7)}')
                J(f'v_mul_f32 {v(SCL+T-1)}, 0x3eb8aa3b, {v(RS)}')
            for r in range(4):
                J(f'v_fma_f32 {v(T0+8+r)}, -{v(M4+r)}, {vCsV}, {v(acc+8+r)}')
            for r in range(4):
                J(f'v_mul_f32 {v(T0+8+r)}, {v(T0+8+r)}, {v(R4+r)}')
            J(f'v_cvt_pk_bf16_f32 {v(V0+2*T)}, {v(T0+8)}, {v(T0+9)}')
            J(f'v_cvt_pk_bf16_f32 {v(V0+2*T+1)}, {v(T0+10)}, {v(T0+11)}')
            return o

        def attn(T, pad=False):
            o = []; J = lambda t, tg=None: o.append(Ins(t, tg))
            q = v(Q0 + 2 * (T - 1), 2)
            J(f'v_mfma_f32_16x16x16_bf16 {v(SC,4)}, {v(K0+2*T,2)}, {q}, 0')
            J(f'v_mfma_f32_16x16x16_bf16 {v(SP,4)}, {v(K0+2*(T-1),2)}, {q}, 0')
            o.append(Dir('gap', 4))
            t = lambda i: v(T0 + 12 + i)
            J(f'v_cndmask_b32 {t(0)}, {v(SC)}, {v(SC+1)}, {sPar}')
            J(f'v_cndmask_b32 {t(1)}, {v(SC+2)}, {v(SC+3)}, {sPar}')
            J(f'v_cndmask_b32 {t(2)}, {v(SP)}, {v(SP+1)}, {sPar}')
            J(f'v_cndmask_b32 {t(3)}, {v(SP+2)}, {v(SP+3)}, {sPar}')
            if T == 1:
                J(f'v_min_f32 {t(2)}, {sCap}, {t(2)}')
                J(f'v_min_f32 {t(3)}, {sCap}, {t(3)}')
            J(f'v_cndmask_b32 {t(0)}, {t(2)}, {t(0)}, {sM0}')
            J(f'v_cndmask_b32 {t(1)}, {t(3)}, {t(1)}, {sM1}')
            J(f'v_max_f32 {t(2)}, {t(0)}, {t(1)}')
            J(f'v_mov_b32 {t(3)}, {t(2)}')
            o.append(Dir('gap', 1))
            J(f'v_permlane16_swap_b32 {t(2)}, {t(3)}')
            J(f'v_max_f32 {t(2)}, {t(2)}, {t(3)}')
            J(f'v_mov_b32 {t(3)}, {t(2)}')
            o.append(Dir('gap', 1))
            J(f'v_permlane32_swap_b32 {t(2)}, {t(3)}')
            J(f'v_max_f32 {t(2)}, {t(2)}, {t(3)}')
            sc = v(SCL + T - 1)
            J(f'v_mul_f32 {t(2)}, {t(2)}, {sc}')
            J(f'v_fma_f32 {t(0)}, {t(0)}, {sc}, -{t(2)}')
            J(f'v_fma_f32 {t(1)}, {t(1)}, {sc}, -{t(2)}')
            J(f'v_exp_f32 {t(0)}, {t(0)}')
            J(f'v_exp_f32 {t(1)}, {t(1)}')
            J(f'v_cvt_pk_bf16_f32 {t(0)}, {t(0)}, {t(0)}')
            J(f'v_cvt_pk_bf16_f32 {t(1)}, {t(1)}, {t(1)}')
            J(f'v_and_b32 {v(PP)}, {t(0)}, {vMP0}')
            J(f'v_and_b32 {v(PP+1)}, {t(1)}, {vMP1}')
            J(f'v_and_b32 {v(PP+2)}, {t(0)}, {vMC0}')
            J(f'v_and_b32 {v(PP+3)}, {t(1)}, {vMC1}')
            o.append(Dir('gap', 1))
            J(f'v_mfma_f32_16x16x32_bf16 {v(DD,4)}, {on}, {v(PP,4)}, 0')
            J(f'v_mfma_f32_16x16x32_bf16 {v(OO,4)}, {v(V0+2*(T-1),4)}, {v(PP,4)}, 0')
            o.append(Dir('gap', 4))
            J(f'v_rcp_f32 {t(0)}, {v(DD)}')
            J(f's_add_u32 {sT2}, {sC1}, {(T-1)*SLOT}')
            for r in range(4):
                J(f'v_mul_f32 {v(OO+r)}, {v(OO+r)}, {t(0)}')
            J(f'v_cvt_pk_bf16_f32 {v(OO)}, {v(OO)}, {v(OO+1)}')
            J(f'v_cvt_pk_bf16_f32 {v(OO+1)}, {v(OO+2)}, {v(OO+3)}')
            J(f'buffer_store_dwordx2 {v(OO,2)}, {vOffO}, {SWS}, {sT2} offen sc1', 'ost')
            return o

        I(f's_lshl_b32 {sC1}, {sTok64}, 14')
        I(f's_add_u32 {sC1}, {sC1}, {sGB}')
        I(f's_lshl_b32 {sT0}, {sCb}, 11')
        I(f's_add_u32 {sC1}, {sC1}, {sT0}')
        I(f's_lshl_b32 {sT0}, {sW}, 9')
        I(f's_add_u32 {sC1}, {sC1}, {sT0}')
        I(f's_add_u32 {sC1}, {sC1}, {OF[layer]}')

        PF = 4
        seq = [(T, ks) for T in order for ks in range(16)]
        P.add(setaddr(order[0]))
        for n in range(PF):
            P.add([rd(seq[n][0], seq[n][1], n % 6)])
        refill = list(refill)
        for step, T in enumerate(order):
            acc = ACC[step & 1]
            groups = []
            for ks in range(16):
                n = step * 16 + ks
                f = v(FR + 4 * (n % 6), 4)
                pre = []
                if ks == 16 - PF and step < 4:
                    Tn = order[step + 1]
                    pre.append(Dir('wait_vm', f'x{Tn}'))
                    if step == 0 or (layer == 1 and step == 3):
                        pre.append(Dir('wait_lgkm0'))
                    pre.append(Ins('s_barrier'))
                    pre += setaddr(Tn)
                if n + PF < len(seq):
                    pre.append(rd(seq[n+PF][0], seq[n+PF][1], (n + PF) % 6))
                ms = []
                for mu in ([0, 1, 2] if T else [1, 2]):
                    w = a((ks * 3 + mu) * 4, 4)
                    d = v(acc + 4 * mu, 4)
                    c = '0' if ks == 0 else d
                    if mu < 2:
                        ms.append(Ins(f'v_mfma_f32_16x16x32_bf16 {d}, {w}, {f}, {c}'))
                    else:
                        ms.append(Ins(f'v_mfma_f32_16x16x32_bf16 {d}, {f}, {w}, {c}'))
                groups.append(pre + [ms[0]])
                for m in ms[1:]:
                    groups.append([m])
                if ks == 16 - PF and 1 <= step < 4:
                    kind, idx = refill.pop(0)
                    groups[-1] = groups[-1] + self.dma(kind, idx, slot(order[step-1]), f'{kind}{idx}')
            fill = []
            if step == 0:
                if layer == 0:
                    self.tree_add(fill, 192, 16)
                    fill.append(Ins('v_lshlrev_b32 v178, 2, v0'))
                    fill.append(Ins(f'v_add_u32 v178, {CS3}, v178'))
                    fill.append(Ins('ds_write_b32 v178, v192'))
                else:
                    self.tree_add(fill, 192, 16)
                    self.stats_finish(fill, 'v192', 'v193', 'v194', 'v195', 'v196')
                    fill.append(Ins(f'v_cndmask_b32 v194, v194, v196, {sHi}'))
                    fill.append(Ins(f's_lshl_b32 {sT0}, {sTh}, 8'))
                    fill.append(Ins(f's_add_u32 {sT0}, {sT0}, {TAB}'))
                    fill.append(Ins(f'v_add_u32 v178, {sT0}, {vL4}'))
                    fill.append(Ins('ds_write_b32 v178, v194'))
                P.add(spread(groups, fill, 12, 34))
                if layer == 1:
                    L, D = self.lab('hc'), self.lab('hcd')
                    O = lambda t: P.I(t, 'opaque')
                    I('v_max_u32 v180, v180, v181')
                    I('v_cmp_gt_u32 vcc, 4, v180')
                    I(f's_mov_b32 {sCnt}, 0')
                    I(f's_cbranch_vccz {D}')
                    P.label(L)
                    O(f'buffer_load_dword v180, {vP8}, {SWS}, {sFH} offen sc1')
                    O(f'buffer_load_dword v181, {vP8}, {SWS}, {sFH} offen offset:{FB} sc1')
                    O(f's_add_u32 {sCnt}, {sCnt}, 1')
                    O('s_waitcnt vmcnt(0)')
                    O('v_max_u32 v180, v180, v181')
                    O('v_cmp_gt_u32 vcc, 4, v180')
                    O(f's_cmp_lt_u32 {sCnt}, 0x40000')
                    O(f's_cbranch_vccz {D}')
                    O(f's_cbranch_scc1 {L}')
                    P.label(D)
                    P.add(self.dma('x2h', 0, slot(0), 'x0'))
                    o = []; self.stats_loads(o, 192, sStH); P.add(o)
                continue
            Tp = order[step - 1]
            fill = norm(Tp, ACC[(step - 1) & 1])
            if Tp >= 2:
                fill += attn(Tp)
            if layer == 1 and step == 3:
                hs = []
                self.tree_add(hs, 192, 16)
                self.stats_finish(hs, 'v192', 'v193', 'v194', 'v195', 'v196')
                hs.append(Ins(f'v_cndmask_b32 v194, v194, v196, {sHi}'))
                hs.append(Ins(f'v_add_u32 v178, {TAB+512}, {vL4}'))
                hs.append(Ins('ds_write_b32 v178, v194'))
                fill = hs + fill
            P.add(spread(groups, fill, 3, len(groups)))
        P.add(nogap(norm(0, ACC[0]) + attn(1)))
        I('s_barrier')
        for s in (slot(4), slot(0)):
            kind, idx = refill.pop(0)
            P.add(self.dma(kind, idx, s, f'{kind}{idx}'))
        self.stamp()
        self.publish('ost', 1 + 4 * layer)

    def pdown(self, layer, which, slots, refill, xslot_after):
        P = self.P; I = P.I
        nch = 4 if which == 'wo' else 14
        nks = nch * 4
        ACCA, ACCB, RX, WF = 48, 64, 80, 112
        ADA, ADB = 'v176', 'v177'
        phase = (1 if which == 'wo' else 3) + 4 * layer
        if which == 'wo':
            self.poll(vP8, sF8, phase)
            vF, KC, buf = vF64, 64, OF[layer]
        else:
            self.poll(vP16, sF16, phase)
            vF, KC, buf = vF224, 224, HF[layer]
        self.stamp()
        I(f's_lshl_b32 {sT0}, {sTh}, 1')
        I(f's_add_u32 {sT0}, {sT0}, {sTok64}')
        I(f's_mul_i32 {sC0}, {sT0}, {KC*256}')
        I(f's_mul_i32 {sT1}, {sKh}, {nks*512}')
        I(f's_add_u32 {sC0}, {sC0}, {sT1}')
        I(f's_add_u32 {sC0}, {sC0}, {sGB}')
        I(f's_add_u32 {sC0}, {sC0}, {buf}')
        def aload(ks):
            o = []
            if ks % 8 == 0 and ks:
                o.append(Ins(f's_add_u32 {sC0}, {sC0}, 4096'))
            o.append(Ins(f'buffer_load_dwordx4 {actreg(ks % 32)}, {vF}, {SWS}, {sC0} offen offset:{(ks % 8)*512} sc1'))
            return o
        for ks in range(min(32, nks)):
            P.add(aload(ks))
        slots = list(slots); refill = list(refill)
        def setaddr(j):
            return [Ins(f'v_add_u32 {ADA}, {slots[j]*SLOT}, {vTrA}'), Ins(f'v_add_u32 {ADB}, {slots[j]*SLOT}, {vTrB}')]
        def wrd(ks):
            b = WF + 8 * (ks % 4); o = (ks % 4) * 2048
            return [Ins(f'ds_read_b64_tr_b16 {v(b,2)}, {ADA} offset:{o}'),
                    Ins(f'ds_read_b64_tr_b16 {v(b+2,2)}, {ADA} offset:{o+512}'),
                    Ins(f'ds_read_b64_tr_b16 {v(b+4,2)}, {ADB} offset:{o}'),
                    Ins(f'ds_read_b64_tr_b16 {v(b+6,2)}, {ADB} offset:{o+512}')]
        I('s_barrier')
        PF = 2
        P.add(setaddr(0))
        for ks in range(PF):
            P.add(wrd(ks))
        xslot = None
        for ks in range(nks):
            j = ks // 4
            post = []
            if ks % 4 == 4 - PF and j + 1 < nch:
                P.wait_vm(f'{which}{j+1}')
                I('s_barrier')
                P.add(setaddr(j + 1))
                if j >= 1:
                    fs_ = slots[j - 1]
                    if j == nch - 2:
                        xslot = fs_
                    elif refill:
                        kind, idx = refill.pop(0)
                        if kind == which:
                            slots.append(fs_)
                        post = self.dma(kind, idx, fs_, f'{kind}{idx}')
                        self.placed[(kind, idx)] = fs_
            b = WF + 8 * (ks % 4)
            rds = wrd(ks + PF) if ks + PF < nks else []
            ca = '0' if ks == 0 else v(ACCA, 16)
            cb_ = '0' if ks == 0 else v(ACCB, 16)
            I(f'v_mfma_f32_32x32x16_bf16 {v(ACCB,16)}, {v(b+4,4)}, {actreg(ks % 32)}, {cb_}')
            P.add(rds[:2])
            I(f'v_mfma_f32_32x32x16_bf16 {v(ACCA,16)}, {v(b,4)}, {actreg(ks % 32)}, {ca}')
            P.add(rds[2:])
            if ks + 32 < nks:
                P.add(aload(ks + 32))
            P.add(post)
        I(f's_add_u32 {sT0}, {sM0W}, {xslot*SLOT}')
        I(f'v_add_u32 {ADA}, {sT0}, {vL16}')
        I(f'v_xor_b32 {ADB}, {2*4096}, {ADA}')
        for i in range(4):
            I(f'ds_write_b128 {ADA}, {v(ACCB+4*i,4)} offset:{i*1024}')
        P.wait_lgkm0()
        I('s_barrier')
        for i in range(4):
            I(f'ds_read_b128 {v(RX+4*i,4)}, {ADB} offset:{i*1024}')
        for i in range(16):
            I(f'v_add_f32 {v(RES+i)}, {v(RES+i)}, {v(ACCA+i)}')
        for i in range(16):
            I(f'v_add_f32 {v(RES+i)}, {v(RES+i)}, {v(RX+i)}')
        PK = 96
        for i in range(8):
            I(f'v_cvt_pk_bf16_f32 {v(PK+i)}, {v(RES+2*i)}, {v(RES+2*i+1)}')
        final = (which == 'wd' and layer == 1)
        if final:
            I(f'buffer_store_dwordx4 {v(PK,4)}, {vRM}, {SOUT}, {sRM} offen')
            I(f'buffer_store_dwordx4 {v(PK+4,4)}, {vRM}, {SOUT}, {sRM} offen offset:16')
            self.stamp()
            return
        dst = X1F[layer] if which == 'wo' else X2F
        I(f's_lshl_b32 {sT0}, {sTh}, 1')
        I(f's_add_u32 {sT0}, {sT0}, {sTok64}')
        I(f's_lshl_b32 {sT1}, {sT0}, 14')
        I(f's_lshl_b32 {sT2}, {sCb}, 1')
        I(f's_add_u32 {sT2}, {sT2}, {sKh}')
        I(f's_lshl_b32 {sT3}, {sT2}, 10')
        I(f's_add_u32 {sT1}, {sT1}, {sT3}')
        I(f's_add_u32 {sT1}, {sT1}, {sGB}')
        I(f's_add_u32 {sT1}, {sT1}, {dst}')
        I(f'buffer_store_dwordx4 {v(PK,4)}, {vS64}, {SWS}, {sT1} offen sc1', 'xst')
        I(f'buffer_store_dwordx4 {v(PK+4,4)}, {vS64}, {SWS}, {sT1} offen offset:256 sc1', 'xst')
        I('v_mov_b32 v104, 0')
        I('v_mov_b32 v105, 0')
        for i in range(8):
            I(f'v_dot2_f32_bf16 v104, {v(PK+i)}, {v(ONES)}, v104')
            I(f'v_dot2_f32_bf16 v105, {v(PK+i)}, {v(PK+i)}, v105')
        I(f's_lshl_b32 {sT0}, {sT0}, 11')
        I(f's_lshl_b32 {sT2}, {sT2}, 8')
        I(f's_add_u32 {sT0}, {sT0}, {sT2}')
        I(f's_add_u32 {sT0}, {sT0}, {sGB}')
        I(f's_add_u32 {sT0}, {sT0}, {ST[2*layer] if which == "wo" else ST[1]}')
        I('v_permlane32_swap_b32 v104, v105')
        I('v_add_f32 v104, v104, v105')
        I(f'buffer_store_dword v104, {vL4}, {SWS}, {sT0} offen sc1', 'xst')
        for i in range(8):
            I(f'v_lshlrev_b32 {v(RES+2*i)}, 16, {v(PK+i)}')
            I(f'v_and_b32 {v(RES+2*i+1)}, 0xffff0000, {v(PK+i)}')
        for fs_ in slots[nch-2:nch]:
            if refill:
                kind, idx = refill.pop(0)
                P.add(self.dma(kind, idx, fs_, f'{kind}{idx}'))
                self.placed[(kind, idx)] = fs_
        self.stamp()
        self.publish('xst', phase + 1)
        if refill:
            kind, idx = refill.pop(0)
            P.add(self.dma(kind, idx, xslot, f'{kind}{idx}'))
            self.placed[(kind, idx)] = xslot
        assert not refill

    def p3(self, layer, refill):
        P = self.P; I = P.I
        ACC = [48, 80]; WF = 112; CS = 136; T0 = 152; PK = 168
        AD, ADC = 'v176', 'v177'
        MEAN, CA, CB, IV = 'v178', 'v179', 'v180', 'v181'
        self.poll(vP16, sF16, 2 + 4 * layer)
        self.stamp()
        I(f's_and_b32 {sT0}, {sRb}, 1')
        I(f's_lshl_b32 {sT0}, {sT0}, 2')
        I(f's_add_u32 {sT0}, {sT0}, {sW}')
        I(f's_lshl_b32 {sC0}, {sT0}, 15')
        I(f's_add_u32 {sC0}, {sC0}, {sGB}')
        I(f's_add_u32 {sC0}, {sC0}, {X1F[layer]}')
        for ks in range(32):
            if ks % 8 == 0 and ks:
                I(f's_add_u32 {sC0}, {sC0}, 4096')
            I(f'buffer_load_dwordx4 {actreg(ks)}, {vF64}, {SWS}, {sC0} offen offset:{(ks % 8)*512} sc1')
        I(f's_lshl_b32 {sT1}, {sT0}, 12')
        I(f's_add_u32 {sT1}, {sT1}, {sGB}')
        I(f's_add_u32 {sT1}, {sT1}, {ST[2*layer]}')
        o = []; self.stats_loads(o, 80, sT1); P.add(o)
        I(f's_mul_i32 {sC1}, {sT0}, {2*224*256}')
        I(f's_mul_i32 {sT1}, {sFs}, {14*256}')
        I(f's_add_u32 {sC1}, {sC1}, {sT1}')
        I(f's_add_u32 {sC1}, {sC1}, {sGB}')
        I(f's_add_u32 {sC1}, {sC1}, {HF[layer]}')
        I(f'v_lshrrev_b32 {ADC}, 5, {vLane}')
        I(f'v_lshlrev_b32 {ADC}, 6, {ADC}')
        I(f'v_add_u32 {ADC}, {CS3}, {ADC}')
        I('s_barrier')
        refill = list(refill)
        slot_of = lambda c: self.placed[('gu', c)]
        NB, PF = 6, 4
        nfr = 224
        def rd(n):
            return Ins(f'ds_read_b128 {v(WF+4*(n % NB),4)}, {AD} offset:{(n % 16)*1024}')
        def epi(g, u, csg, csu, cnt, store):
            o = []; J = lambda t, tg=None: o.append(Ins(t, tg))
            for q in range(cnt // 4):
                cg, cu = CS + 8 * (q & 1), CS + 8 * (q & 1) + 4
                J(f'ds_read_b128 {v(cg,4)}, {ADC} offset:{csg+16*q}')
                J(f'ds_read_b128 {v(cu,4)}, {ADC} offset:{csu+16*q}')
                o.append(Dir('gap', 2))
                R = range(4)
                G_ = lambda r: v(g + 4 * q + r); U_ = lambda r: v(u + 4 * q + r); T_ = lambda r: v(T0 + r)
                for r in R: J(f'v_fma_f32 {G_(r)}, -{MEAN}, {v(cg+r)}, {G_(r)}')
                for r in R: J(f'v_mul_f32 {T_(r)}, {G_(r)}, {G_(r)}')
                for r in R: J(f'v_fma_f32 {U_(r)}, -{MEAN}, {v(cu+r)}, {U_(r)}')
                for r in R: J(f'v_fma_f32 {T_(r)}, {T_(r)}, {CB}, {CA}')
                for r in R: J(f'v_mul_f32 {T_(r)}, {T_(r)}, {G_(r)}')
                for r in R:
                    J(f'v_exp_f32 {T_(r)}, {T_(r)}')
                    J(f'v_mul_f32 {U_(r)}, {U_(r)}, {G_(r)}')
                for r in R: J(f'v_fma_f32 {T_(r)}, {T_(r)}, {IV}, {IV}')
                for r in R: J(f'v_rcp_f32 {T_(r)}, {T_(r)}')
                for r in R: J(f'v_mul_f32 {U_(r)}, {U_(r)}, {T_(r)}')
                pk = PK + 2 * q
                J(f'v_cvt_pk_bf16_f32 {v(pk)}, {U_(0)}, {U_(1)}')
                J(f'v_cvt_pk_bf16_f32 {v(pk+1)}, {U_(2)}, {U_(3)}')
                if q & 1:
                    J(store(q >> 1, v(PK + 4 * (q >> 1), 4)), 'hst')
            return o
        I(f'v_add_u32 {AD}, {slot_of(0)*SLOT}, {vL16}')
        for n in range(PF):
            P.add([rd(n)])
        n = 0
        for p in range(4):
            acc = ACC[p & 1]
            groups = []
            cnt = 64 if p < 3 else 32
            for i in range(cnt):
                c = n // 16
                pre = []; post = []
                if n % 16 == 16 - PF and c + 1 < 14:
                    pre.append(Dir('wait_vm', f'gu{c+1}'))
                    pre.append(Ins('s_barrier'))
                    if c >= 1:
                        kind, idx = refill.pop(0)
                        post = self.dma(kind, idx, slot_of(c - 1), f'{kind}{idx}')
                        self.placed[(kind, idx)] = slot_of(c - 1)
                    pre.append(Ins(f'v_add_u32 {AD}, {slot_of(c+1)*SLOT}, {vL16}'))
                if n + PF < nfr:
                    pre.append(rd(n + PF))
                if p < 3:
                    ks, d = i >> 1, v(acc + 16 * (i & 1), 16)
                else:
                    ks, d = i, v(acc, 16)
                cin = '0' if ks == 0 else d
                groups.append(pre + [Ins(f'v_mfma_f32_32x32x16_bf16 {d}, {v(WF+4*(n % NB),4)}, {actreg(ks)}, {cin}')] + post)
                n += 1
            if p == 0:
                fill = []
                self.tree_add(fill, 80, 16)
                self.stats_finish(fill, 'v80', 'v81', MEAN, IV, 'v82')
                fill.append(Ins(f'v_mul_f32 {CA}, 0xc0135761, v82'))
                fill.append(Ins('v_mul_f32 v81, v82, v82'))
                fill.append(Ins('v_mul_f32 v81, 0x3d372713, v81'))
                fill.append(Ins(f'v_mul_f32 {CB}, {CA}, v81'))
                P.add(spread(groups, fill, 52, 64))
            else:
                pa = ACC[(p - 1) & 1]; pp = p - 1
                st = lambda h, regs, pp=pp: f'buffer_store_dwordx4 {regs}, {vS224}, {SWS}, {sC1} offen offset:{pp*1024+h*256} sc1'
                fill = epi(pa, pa + 16, pp * 256, pp * 256 + 128, 16, st)
                P.add(spread(groups, fill, 2, len(groups)))
        st = lambda h, regs: f'buffer_store_dwordx4 {regs}, {vF224}, {SWS}, {sC1} offen offset:3072 sc1'
        P.add(nogap(epi(ACC[1], ACC[1] + 8, 768, 768 + 32, 8, st)))
        I('s_barrier')
        for c in (12, 13):
            kind, idx = refill.pop(0)
            P.add(self.dma(kind, idx, slot_of(c), f'{kind}{idx}'))
            self.placed[(kind, idx)] = slot_of(c)
        assert not refill
        self.stamp()
        self.publish('hst', 3 + 4 * layer)

    def build(self):
        P = self.P
        self.placed = {}
        self.prologue()
        self.load_wq()
        wo_slots = [5, 6, 7, 8]
        def run():
            nonlocal wo_slots
            for layer in range(2):
                for i, s in enumerate([0, 1, 2, 3, 4]):
                    self.placed[('gu', i)] = s
                self.p1(layer, [('gu', i) for i in range(5)])
                if STOP <= 1 + 4 * layer: return
                self.pdown(layer, 'wo', wo_slots, [('gu', i) for i in range(5, 9)], None)
                if STOP <= 2 + 4 * layer: return
                self.p3(layer, [('gu', i) for i in range(9, 14)] + [('wd', i) for i in range(9)])
                if STOP <= 3 + 4 * layer: return
                rf = [('wd', i) for i in range(9, 14)]
                self.pdown_wd(layer, rf)
                if STOP <= 4 + 4 * layer: return
        run()
        if STAMPS:
            P.I(f's_lshl_b32 {sT0}, s2, 10')
            P.I(f's_add_u32 {sT0}, {sT0}, {STMP}')
            P.I('v_lshlrev_b32 v48, 2, v0')
            P.I(f'buffer_store_dword {vStamp}, v48, {SWS}, {sT0} offen')
        P.label('L_end')
        P.I('s_endpgm')

    def pdown_wd(self, layer, rf):
        slots = [self.placed[('wd', i)] for i in range(9)]
        self._wd_plan(layer, slots, rf)

    def _wd_plan(self, layer, slots, rf):
        order = list(slots)
        for i in range(5):
            order.append(order[i])
        rel = [order[i] for i in range(11)] + [order[12], order[13], order[11]]
        plan = list(rf)
        for s in rel[5:]:
            if layer == 0 and s >= 5:
                plan.append(('wo', s - 5))
            else:
                plan.append(None)
        self._plan = plan
        self.pdown2(layer, slots, plan)

    def pdown2(self, layer, slots, plan):
        class RL(list):
            pass
        orig = self.dma
        def dma2(kind, idx, slot, tag):
            if kind == 'none':
                return []
            return orig(kind, idx, slot, tag)
        self.dma = dma2
        self.pdown(layer, 'wd', slots, [p if p else ('none', 0) for p in plan], None)
        self.dma = orig

def nogap(items):
    return [x for x in items if not (isinstance(x, Dir) and x.what == 'gap')]

def spread(groups, fill, start, end):
    gaps = sum(x.arg for x in fill if isinstance(x, Dir) and x.what == 'gap')
    nins = len(nogap(fill))
    nslots = max(1, end - start - gaps)
    per = nins / nslots
    out = []; k = 0; credit = 0.0; skip = 0
    for i, g in enumerate(groups):
        out.extend(g)
        if start <= i < end:
            if skip:
                skip -= 1
                continue
            credit += per
            while k < len(fill) and credit >= 1 - 1e-9:
                x = fill[k]
                if isinstance(x, Dir) and x.what == 'gap':
                    skip = x.arg; k += 1
                    break
                out.append(x); k += 1; credit -= 1
    out.extend(nogap(fill[k:]))
    return out

HEADER = open('cdna_kernels/' + NAME + '.s.ref').read().split('; Override')[0]

def generate(path):
    g = G()
    g.build()
    items = hazard_pass(wait_pass(g.P.items))
    body = render(items)
    txt = HEADER + f"""; Persistent single-launch implementation generated by gen/gen.py (hand-written generator).
; @launch grid=(256,1,1) block=(256,1,1) lds=163840
.amdgcn_target "amdgcn-amd-amdhsa--gfx950"
.text
.globl {NAME}_kernel
.p2align 8
.type {NAME}_kernel,@function
{NAME}_kernel:
{body}
.fill 16640, 4, 0xbf800000
.section .rodata,"a"
.p2align 6
.amdhsa_kernel {NAME}_kernel
  .amdhsa_next_free_vgpr 512
  .amdhsa_next_free_sgpr 102
  .amdhsa_accum_offset 256
  .amdhsa_group_segment_fixed_size 0
  .amdhsa_kernarg_size 80
  .amdhsa_user_sgpr_count 2
  .amdhsa_user_sgpr_kernarg_segment_ptr 1
  .amdhsa_system_sgpr_workgroup_id_x 1
  .amdhsa_float_denorm_mode_32 3
.end_amdhsa_kernel
"""
    open(path, 'w').write(txt)
    return g

if __name__ == '__main__':
    out = sys.argv[1]
    for a_ in sys.argv[2:]:
        k, val = a_.split('=')
        globals()[k] = eval(val)
    g = generate(out)
    print("stamps:", g.nstamp)
```
